```python
import torch

def _softmax(x, axis=-1):
    return torch.softmax(x, dim=axis)
def _gelu(x):
    return torch.nn.functional.gelu(x, approximate="tanh")
def _silu(x):
    return torch.nn.functional.silu(x)
def _sigmoid(x):
    return torch.sigmoid(x)
def _layernorm(x, axis=-1, eps=1e-5):
    m = x.mean(dim=axis, keepdim=True)
    v = x.var(dim=axis, keepdim=True, unbiased=False)
    return (x - m) / torch.sqrt(v + eps)
def _scatter_add(tgt, idx, src, axis=0):
    return tgt.clone().index_add_(axis, idx, src)
def _segment_sum(src, seg, n):
    out = torch.zeros((n,) + src.shape[1:], dtype=src.dtype)
    return out.index_add_(0, seg, src)
def _pad(x, pw):
    flat = tuple(v for pair in reversed(pw) for v in pair)
    return torch.nn.functional.pad(x, flat)

kernel_name = 'gated_mix__ssm_conv_s4d__moe_arch_mod__prompt'

def setup_inputs():

    _w = (lambda a: (lambda t: t.to(torch.bfloat16) if t.is_floating_point() else t)(torch.as_tensor(a)))
    def _A_setup():
        Bsz, L, D, N = 1, 2048, 512, 128
        return {
            "u": _w((lambda *s: torch.randn(*s, dtype=torch.bfloat16) * 0.05)(Bsz, L, D)),
            "log_A_real": _w((lambda *s: torch.randn(*s, dtype=torch.bfloat16) * 3.2)(D, N) * 0.5),
            "A_imag": _w((lambda *s: torch.randn(*s, dtype=torch.bfloat16) * 0.1)(D, N) * 3.14),
            "C_real": _w((lambda *s: torch.randn(*s, dtype=torch.bfloat16) * 1.6)(D, N) / N ** 0.5),
            "C_imag": _w((lambda *s: torch.randn(*s, dtype=torch.bfloat16) * 1.6)(D, N) / N ** 0.5),
            "log_dt": _w((lambda *s: torch.randn(*s, dtype=torch.bfloat16) * 0.1)(D) * 0.5 - 4.0),
            "D_skip": _w((lambda *s: torch.randn(*s, dtype=torch.bfloat16) * 0.2)(D)),
        }
    _A_in = _A_setup()

    def _B_setup():
        B, S, D, F, C = 1, 2048, 512, 1792, 1
        return {
            "x": _w((lambda *s: torch.randn(*s, dtype=torch.bfloat16) * 0.05)(B, S, D)),
            "w_r": _w((lambda *s: torch.randn(*s, dtype=torch.bfloat16) * 3.2)(D)),
            "w_gate": _w((lambda *s: torch.randn(*s, dtype=torch.bfloat16) * 0.2)(D, F)),
            "w_up": _w((lambda *s: torch.randn(*s, dtype=torch.bfloat16) * 0.2)(D, F)),
            "w_down": _w((lambda *s: torch.randn(*s, dtype=torch.bfloat16) * 0.2)(F, D)),
        }
    _B_in = _B_setup()

    return {
        "A_u": _A_in["u"],
        "A_log_A_real": _A_in["log_A_real"],
        "A_A_imag": _A_in["A_imag"],
        "A_C_real": _A_in["C_real"],
        "A_C_imag": _A_in["C_imag"],
        "A_log_dt": _A_in["log_dt"],
        "A_D_skip": _A_in["D_skip"],
        "B_x": _B_in["x"],
        "B_w_r": _B_in["w_r"],
        "B_w_gate": _B_in["w_gate"],
        "B_w_up": _B_in["w_up"],
        "B_w_down": _B_in["w_down"],
        "gate_w": _w((lambda *s: torch.randn(*s, dtype=torch.bfloat16) * 0.05)(512) * 16.0),
    }

def reference(A_u, A_log_A_real, A_A_imag, A_C_real, A_C_imag, A_log_dt, A_D_skip, B_x, B_w_r, B_w_gate, B_w_up, B_w_down, gate_w):
    def _A_ref(u, log_A_real, A_imag, C_real, C_imag, log_dt, D_skip):
        L = u.shape[1]
        dt = torch.exp(log_dt)
        A = -torch.exp(log_A_real) + 1j * A_imag
        C = (C_real + 1j * C_imag) * dt[:, None]
        pos = (lambda x, dt: x.to(dt))(torch.arange(L), log_dt.dtype)
        P = torch.exp((A * dt[:, None])[:, :, None] * pos[None, None, :])
        K = 2.0 * torch.einsum("dn,dnl->dl", C, P).real
        L2 = 2 * L
        u_t = (lambda x, *d: x.permute(*d))(u, 0, 2, 1)
        Kf = (lambda x, *a, **k: torch.fft.rfft(x.float(), *a, **k))(K, L2)
        Uf = (lambda x, *a, **k: torch.fft.rfft(x.float(), *a, **k))(u_t, L2)
        y = (lambda x, *a, **k: torch.fft.irfft(x, *a, **k).to(torch.bfloat16))(Uf * Kf[None, :, :], L2)[:, :, :L]
        y = (lambda x, *d: x.permute(*d))(y, 0, 2, 1)
        return y + u * D_skip[None, None, :]

    def _B_ref(x, w_r, w_gate, w_up, w_down):
        B, S, D = x.shape
        C = 1
        r = x @ w_r
        idx = torch.argsort(-r, axis=-1)[:, :C]
        idx_e = (lambda x, n, axis: torch.repeat_interleave(x, n, dim=axis))(idx.reshape(B, C, 1), D, axis=2)
        x_sel = (lambda x, i, axis: torch.take_along_dim(x, i, dim=axis))(x, idx_e, axis=1)
        g = _silu(x_sel @ w_gate)
        u = x_sel @ w_up
        y = (g * u) @ w_down
        r_sel = _sigmoid((lambda x, i, axis: torch.take_along_dim(x, i, dim=axis))(r, idx, axis=1))
        y = y * r_sel.reshape(B, C, 1)
        b_off = (torch.arange(B) * S).reshape(B, 1)
        flat_idx = (idx + b_off).reshape(B * C)
        zero = (x * 0.0).reshape(B * S, D)
        upd = _scatter_add(zero, flat_idx, y.reshape(B * C, D), axis=0)
        return x + upd.reshape(B, S, D)

    x = A_u
    g = _sigmoid((x * gate_w).sum(-1, keepdims=True))
    a = _A_ref(x, A_log_A_real, A_A_imag, A_C_real, A_C_imag, A_log_dt, A_D_skip)
    b = _B_ref(x, B_w_r, B_w_gate, B_w_up, B_w_down)
    return g * a + (1 - g) * b
```

```python
import re

class Asm:
    def __init__(self):
        self.lines = []
    def __call__(self, s):
        for l in s.split('\n'):
            l = l.strip()
            if l: self.lines.append(l)
    def text(self):
        out = []
        for l in self.lines:
            out.append(l if (l.endswith(':') or l.startswith('.')) else '    ' + l)
        return '\n'.join(out) + '\n'

def vr(a, n=1):
    return f'v{a}' if n == 1 else f'v[{a}:{a+n-1}]'
def sr(a, n=1):
    return f's{a}' if n == 1 else f's[{a}:{a+n-1}]'

_reg = re.compile(r'\b([vsa])(\d+)\b|\b([vsa])\[(\d+):(\d+)\]')
def regs(op):
    out = set()
    for m in _reg.finditer(op):
        if m.group(1): out.add((m.group(1), int(m.group(2))))
        else:
            for i in range(int(m.group(4)), int(m.group(5))+1): out.add((m.group(3), i))
    if re.search(r'\bvcc\b', op): out.add(('s', 'vcc'))
    if re.search(r'\bexec\b', op): out.add(('s', 'exec'))
    if re.search(r'\bm0\b', op): out.add(('s', 'm0'))
    return out

TRANS = ('v_exp_f32','v_log_f32','v_rcp_f32','v_rsq_f32','v_sqrt_f32','v_sin_f32','v_cos_f32')
def parse(line):
    line = line.split(';')[0].strip()
    if not line or line.endswith(':') or line.startswith('.'): return None
    parts = line.split(None, 1)
    op = parts[0]
    ops = []
    if len(parts) > 1:
        cur = ''; d = 0
        for ch in parts[1]:
            if ch == '[': d += 1
            if ch == ']': d -= 1
            if ch == ',' and d == 0: ops.append(cur.strip()); cur = ''
            else: cur += ch
        ops.append(cur.strip())
    I = dict(op=op, ops=ops, line=line, w=set(), r=set())
    isv = op.startswith('v_')
    if op.startswith('v_mfma'):
        I['cls'] = 'mfma'; I['w'] = regs(ops[0]); I['ab'] = regs(ops[1]) | regs(ops[2]); I['c'] = regs(ops[3].split()[0]); I['r'] = I['ab'] | I['c']
        I['passes'] = 8 if '32x32' in op else 4
    elif isv:
        I['cls'] = 'valu'
        I['w'] = regs(ops[0]);
        for o in ops[1:]: I['r'] |= regs(o)
        if op.startswith(('v_fmac', 'v_dot2c')) or '_dpp' in op or 'sdwa' in op or op.startswith('v_writelane'): I['r'] |= I['w']
        if op.startswith('v_permlane'): I['w'] |= regs(ops[1]); I['r'] |= regs(ops[0])
        if op.startswith('v_cmpx'): I['w'].add(('s','exec'))
        if op.startswith(('v_add_co', 'v_sub_co', 'v_addc_co')): I['w'] |= regs(ops[1])
    elif op.startswith(('global_load', 'buffer_load')):
        I['cls'] = 'vmem'; I['w'] = regs(ops[0])
        for o in ops[1:]: I['r'] |= regs(o)
    elif op.startswith(('global_store', 'buffer_store', 'global_atomic', 'buffer_atomic')):
        I['cls'] = 'vmem'
        for o in ops: I['r'] |= regs(o)
        if 'x3' in op or 'x4' in op:
            I['wide'] = regs(ops[1]) if op.startswith('global') else regs(ops[0])
    elif op.startswith('ds_'):
        I['cls'] = 'ds'
        if op.startswith(('ds_read', 'ds_bpermute', 'ds_permute', 'ds_swizzle')) or '_rtn' in op:
            I['w'] = regs(ops[0])
            for o in ops[1:]: I['r'] |= regs(o)
        else:
            for o in ops: I['r'] |= regs(o)
        if 'addtid' in op: I['r'].add(('s','m0'))
    elif op.startswith('s_'):
        I['cls'] = 'salu'
        if op.startswith(('s_cmp', 's_bitcmp', 's_cbranch', 's_branch', 's_waitcnt', 's_nop', 's_barrier', 's_sleep', 's_setprio', 's_endpgm')):
            for o in ops: I['r'] |= regs(o)
        else:
            I['w'] = regs(ops[0])
            for o in ops[1:]: I['r'] |= regs(o)
            if 'saveexec' in op: I['w'].add(('s','exec'))
    else:
        I['cls'] = 'other'
    I['ws'] = 1
    if op == 's_nop': I['ws'] = int(ops[0], 0) + 1
    return I

def check(lines):
    ins = []
    for n, l in enumerate(lines):
        I = parse(l)
        if I: I['n'] = n; ins.append(I)
    probs = []
    for k, C in enumerate(ins):
        dist = 0
        for j in range(k-1, max(-1, k-24), -1):
            P = ins[j]
            if P['op'] in ('s_branch', 's_endpgm'): break
            need = 0; why = ''
            def upd(n, w):
                nonlocal need, why
                if n > need: need, why = n, w
            pv = {x for x in P['w'] if x[0] in 'va'}; ps = {x for x in P['w'] if x[0] == 's'}
            if P['cls'] == 'valu':
                if C['cls'] == 'mfma' and pv & C['r']: upd(2, 'valu->mfma')
                if C['cls'] == 'valu' and '_dpp' in C['op'] and pv & C['r']: upd(2, 'valu->dpp')
                if C['op'].startswith('v_permlane') and pv & C['r']: upd(2, 'valu->permlane')
                if C['op'].startswith(('v_readlane', 'v_readfirstlane')) and pv & C['r']: upd(1, 'valu->readlane')
                if P['op'].startswith(TRANS) and C['cls'] in ('valu',) and not C['op'].startswith(TRANS) and pv & C['r']: upd(1, 'trans')
                if P['op'].startswith('v_dot2') and (pv & (C['r'] | C['w'])) and C['cls'] != 'salu':
                    if C['op'] != P['op']: upd(3, 'dot->other')
                    elif pv & (regs(C['ops'][1]) | regs(C['ops'][2])): upd(3, 'dot->dotAB')
                if ps:
                    if C['cls'] == 'vmem' and ps & C['r']: upd(5, 'valu sgpr->vmem')
                    if C['cls'] == 'valu' and ps & C['r']:
                        upd(4 if C['op'].startswith(('v_readlane','v_writelane')) else 2, 'valu sgpr->valu')
                    if ('s','exec') in ps:
                        if C['cls'] == 'mfma': upd(4, 'valu exec->mfma')
                        if '_dpp' in C['op']: upd(5, 'valu exec->dpp')
                if 'sdwa' in P['op'] and C['cls'] == 'valu' and pv & (C['r']|C['w']): upd(1, 'sdwa')
            if P['cls'] in ('vmem', 'ds') and C['cls'] == 'valu' and '_dpp' in C['op']: pass
            if P['cls'] == 'mfma':
                pz = P['passes']
                if C['cls'] == 'mfma':
                    if P['w'] & C['ab']: upd({4: 8, 8: 12}[pz], 'mfma->mfmaAB')
                    if P['w'] & C['c'] and not (P['w'] == C['c'] and C['passes'] == pz): upd({4: 6, 8: 10}[pz], 'mfma->mfmaC')
                elif C['cls'] in ('valu', 'vmem', 'ds'):
                    if P['w'] & (C['r'] | C['w']): upd({4: 8, 8: 12}[pz], 'mfma->use')
                    if C['cls'] == 'valu' and P['c'] & C['w']: upd({4: 3, 8: 7}[pz], 'mfma C WAR')
            if P.get('wide') and P['wide'] & C['w']: upd(2 if C['cls'] in ('valu','mfma') else 1, 'wide store WAR')
            if P['cls'] == 'salu' and ('s','m0') in P['w'] and ('s','m0') in C['r'] and C['cls'] in ('ds','vmem'): upd(1, 'm0')
            if need > dist:
                probs.append(f"line {C['n']}: [{why}] need {need} have {dist}: '{P['line']}' -> '{C['line']}'")
            dist += P['ws']
            if dist >= 20: break
    return probs
```

```python
import sys, os
sys.path.insert(0, os.path.dirname(os.path.abspath(__file__)))
from asmlib import Asm, vr, sr, check

KN = 'gated_mix__ssm_conv_s4d__moe_arch_mod__prompt'
STAMPS = '--stamps' in sys.argv
DEBUGK = '--debugk' in sys.argv
OUT = [a for a in sys.argv[1:] if not a.startswith('--')]
OUT = OUT[0] if OUT else 'cdna_kernels/%s.s' % KN

P_U, P_LA, P_AI, P_CR, P_CI, P_LDT, P_DSK, P_BX = [sr(8 + 2*i, 2) for i in range(8)]
P_WR, P_WG, P_WU, P_WD, P_GW, P_OUT, P_DBG, P_WS = [sr(24 + 2*i, 2) for i in range(8)]
S_WAVE, S_X, S_W, S_ID = 's40', 's41', 's42', 's43'

WS_G = 0
WS_Y = 0x4000
RS = 272
VW = 32 * RS
UW = 21 * RS
L_V = 0
L_U = 8 * VW
L_UP = L_U + 8 * UW
PH = 1152
L_K = L_UP + 16 * PH
KW = 4160
L_FLAG = L_K + 4 * KW
LDS_BYTES = L_FLAG + 64
L_YM = 0
L_YC = 33024
YCW = 8448
OFFU = 60000
M0U = L_U - OFFU
LOG2E = 0x3fb8aa3b
NLOG2E = 0xbfb8aa3b
INV2PI = 0x3e22f983
SPIN = 1 << 22

a = Asm()
def stamp(i):
    if STAMPS: a(f's_memrealtime s[{64+2*i}:{65+2*i}]')

def wave_umax(v, sdst):
    for c in ('row_shr:1 row_mask:0xf', 'row_shr:2 row_mask:0xf', 'row_shr:4 row_mask:0xf', 'row_shr:8 row_mask:0xf',
              'row_bcast:15 row_mask:0xa', 'row_bcast:31 row_mask:0xc'):
        a('s_nop 1')
        a(f'v_max_u32_dpp {v}, {v}, {v} {c} bank_mask:0xf')
    a('s_nop 0')
    a(f'v_readlane_b32 {sdst}, {v}, 63')

def poll_keys(lbl, vaddr, vt, skey):
    a(f's_mov_b32 s58, 0')
    a(f'{lbl}:')
    a(f'global_load_dword {vt}, {vaddr}, {P_DBG} sc1')
    a(f's_add_u32 s58, s58, 1')
    a(f's_waitcnt vmcnt(0)')
    a(f'v_cmp_eq_u32 vcc, 0, {vt}')
    a(f's_cmp_gt_u32 s58, {SPIN}')
    a(f's_cbranch_scc1 {lbl}_x')
    a(f's_cbranch_vccnz {lbl}')
    a(f'{lbl}_x:')
    wave_umax(vt, skey)

if STAMPS:
    for i in range(1, 8): a(f's_mov_b64 s[{64+2*i}:{65+2*i}], 0')
stamp(0)
a(f'''
s_load_dwordx16 s[8:23], s[0:1], 0
s_load_dwordx16 s[24:39], s[0:1], 64
s_getpc_b64 s[4:5]
L_pc:
v_lshlrev_b32 v1, 7, v0
v_min_u32 v1, L_code_end-L_pc-4, v1
global_load_dword v2, v1, s[4:5]
v_readfirstlane_b32 {S_WAVE}, v0
s_and_b32 {S_X}, s2, 7
s_lshr_b32 {S_W}, s2, 3
v_and_b32 v9, 63, v0
s_lshr_b32 {S_WAVE}, {S_WAVE}, 6
s_cmp_lt_u32 {S_W}, 8
s_cbranch_scc1 L_router
s_cmp_lt_u32 {S_W}, 15
s_cbranch_scc1 L_ffn
s_sub_u32 {S_W}, {S_W}, 16
s_cmp_ge_u32 {S_W}, 16
s_cbranch_scc1 L_exit
''')
a(f'''
s_lshl_b32 {S_ID}, {S_X}, 4
s_add_u32 {S_ID}, {S_ID}, {S_W}
s_lshl_b32 s44, {S_ID}, 10
s_lshl_b32 s45, {S_ID}, 3
v_lshl_add_u32 v3, v0, 1, s44
v_lshrrev_b32 v4, 7, v0
v_lshl_add_u32 v4, v4, 1, s45
v_mov_b32 v10, 0
v_mov_b32 v11, 0
v_mov_b32 v12, 0
v_mov_b32 v13, 0
v_mov_b32 v14, 0
s_add_u32 s46, s45, {(4096 - 2097152) & 0xffffffff}
s_lshl_b32 s47, {S_W}, 17
s_add_u32 s47, s47, s45
s_cmp_ge_u32 {S_WAVE}, 4
s_waitcnt lgkmcnt(0)
global_load_short_d16_hi v14, v4, {P_LDT}
global_load_short_d16_hi v10, v3, {P_LA}
global_load_short_d16_hi v11, v3, {P_AI}
global_load_short_d16_hi v12, v3, {P_CR}
global_load_short_d16_hi v13, v3, {P_CI}
s_cbranch_scc1 L_conv_ld_u
v_and_b32 v5, 127, v0
v_lshl_add_u32 v5, v5, 10, s47
global_load_dword v15, v5, {P_U}
s_branch L_conv
L_conv_ld_u:
v_lshl_add_u32 v5, v0, 13, s46
v_mov_b32 v6, s45
''')
for k in range(8):
    a(f'global_load_dwordx2 v[{16+2*k}:{17+2*k}], v5, {P_U} offset:{(k-4)*1024}')
a(f'global_load_dwordx2 v[32:33], v6, {P_DSK}')
a('s_branch L_conv')

a(f'''
L_router:
s_lshl_b32 {S_ID}, {S_X}, 3
s_add_u32 {S_ID}, {S_ID}, {S_W}
v_lshlrev_b32 v3, 4, v9
s_lshl_b32 s44, {S_ID}, 15
s_lshl_b32 s45, {S_WAVE}, 12
s_add_u32 s44, s44, s45
v_add_u32 v4, s44, v3
s_waitcnt lgkmcnt(0)
''')
for k in range(4):
    a(f'global_load_dwordx4 v[{16+4*k}:{19+4*k}], v4, {P_U} offset:{k*1024}')
a(f'''
global_load_dwordx4 v[32:35], v3, {P_WR}
global_load_dwordx4 v[36:39], v3, {P_GW}
s_lshl_b32 s44, {S_ID}, 11
s_add_u32 s44, s44, {WS_Y}
v_lshl_add_u32 v5, v0, 2, s44
v_mov_b32 v6, 0
global_store_dword v5, v6, {P_WS} sc1
s_lshl_b32 s44, {S_ID}, 5
s_lshl_b32 s45, {S_WAVE}, 2
s_add_u32 s44, s44, s45
v_bfe_u32 v7, v9, 2, 2
v_add_u32 v7, s44, v7
v_lshlrev_b32 v8, 2, v7
global_store_dword v8, v6, {P_WS} sc1
v_sub_u32 v7, 0xfff, v7
ds_write_b32 v6, v6
s_mov_b32 s46, 0xfffff000
s_waitcnt lgkmcnt(0)
s_barrier
s_waitcnt vmcnt(2)
''')
stamp(1)
for d in range(4):
    for k in range(4):
        a(f'v_dot2_f32_bf16 v{40+k}, v{16+4*k+d}, v{32+d}, ' + ('0' if d == 0 else f'v{40+k}'))
        a(f'v_dot2_f32_bf16 v{44+k}, v{16+4*k+d}, v{36+d}, ' + ('0' if d == 0 else f'v{44+k}'))
a('s_nop 2')
for (dst, lo, hi) in ((48, 40, 42), (49, 41, 43), (50, 44, 46), (51, 45, 47)):
    a(f'v_add_f32_dpp v{dst}, v{lo}, v{lo} row_ror:8 row_mask:0xf bank_mask:0x3')
for (dst, lo, hi) in ((48, 40, 42), (49, 41, 43), (50, 44, 46), (51, 45, 47)):
    a(f'v_add_f32_dpp v{dst}, v{hi}, v{hi} row_ror:8 row_mask:0xf bank_mask:0xc')
a(f'''
v_add_f32_dpp v52, v48, v48 row_shl:4 row_mask:0xf bank_mask:0x5
s_nop 0
v_add_f32_dpp v53, v50, v50 row_shl:4 row_mask:0xf bank_mask:0x5
v_add_f32_dpp v52, v49, v49 row_shr:4 row_mask:0xf bank_mask:0xa
s_nop 0
v_add_f32_dpp v53, v51, v51 row_shr:4 row_mask:0xf bank_mask:0xa
s_nop 1
v_permlane32_swap_b32 v52, v53
v_add_f32 v52, v52, v53
v_mov_b32 v53, v52
s_nop 1
v_permlane16_swap_b32 v52, v53
v_add_f32 v52, v52, v53
s_nop 1
v_add_f32_dpp v52, v52, v52 quad_perm:[1,0,3,2] row_mask:0xf bank_mask:0xf
s_nop 1
v_add_f32_dpp v52, v52, v52 quad_perm:[2,3,0,1] row_mask:0xf bank_mask:0xf
v_ashrrev_i32 v53, 31, v52
v_cvt_pk_bf16_f32 v55, v52, v52
v_or_b32 v53, 0x80000000, v53
v_and_b32 v55, 0xffff0000, v55
v_xor_b32 v53, v52, v53
v_mul_f32 v55, {NLOG2E}, v55
v_and_or_b32 v53, v53, s46, v7
v_exp_f32 v55, v55
s_mov_b64 exec, 0x1111
ds_max_u32 v6, v53
s_mov_b64 exec, -1
v_add_f32 v55, 1.0, v55
v_rcp_f32 v55, v55
s_waitcnt vmcnt(0) lgkmcnt(0)
s_barrier
s_cmp_lg_u32 {S_WAVE}, 0
s_cbranch_scc1 L_router_g
ds_read_b32 v53, v6
s_lshl_b32 s44, {S_ID}, 2
v_mov_b32 v54, s44
s_mov_b64 exec, 1
s_waitcnt lgkmcnt(0)
global_store_dword v54, v53, {P_DBG} sc1
s_mov_b64 exec, -1
L_router_g:
v_cvt_pk_bf16_f32 v55, v55, v55
s_mov_b32 exec_lo, 0
s_mov_b32 exec_hi, 0x1111
v_and_b32 v55, 0xffff0000, v55
v_or_b32 v55, 1, v55
global_store_dword v8, v55, {P_WS} sc1
''')
stamp(2)
a('s_branch L_done')

L_P = 0
L_H = 8192
a(f'''
L_ffn:
s_mul_i32 {S_ID}, {S_X}, 7
s_add_u32 {S_ID}, {S_ID}, {S_W}
s_sub_u32 {S_ID}, {S_ID}, 8
s_lshr_b32 s44, {S_WAVE}, 1
v_lshrrev_b32 v3, 4, v9
v_bfe_u32 v4, v9, 2, 2
v_and_b32 v5, 3, v9
v_lshl_add_u32 v6, v4, 2, v3
s_lshl_b32 s45, s44, 4
v_add_u32 v6, s45, v6
s_movk_i32 s46, 0x7000
s_lshl_b32 s47, {S_ID}, 6
s_add_u32 s47, s47, 3584
v_lshl_add_u32 v7, v5, 4, s47
v_mad_u32_u24 v7, v6, s46, v7
v_add_u32 v8, {3*3584}, v7
v_add_u32 v10, {6*3584}, v7
s_bitcmp1_b32 {S_WAVE}, 0
s_waitcnt lgkmcnt(0)
s_cselect_b64 s[48:49], {P_WU}, {P_WG}
''')
for i in range(8):
    r = (7, 8, 10)[i // 3]
    a(f'global_load_dwordx4 v[{16+4*i}:{19+4*i}], v{r}, s[48:49] offset:{(i % 3 - 1) * 3584}')
a(f'''
s_lshl_b32 s45, {S_ID}, 15
s_lshl_b32 s46, {S_WAVE}, 7
s_add_u32 s45, s45, s46
s_add_u32 s45, s45, 4096
v_and_b32 v11, 15, v9
v_lshl_add_u32 v12, v11, 3, s45
v_lshl_add_u32 v12, v3, 13, v12
''')
for i in range(8):
    a(f'global_load_dwordx2 v[{48+2*i}:{49+2*i}], v12, {P_WD} offset:{(i-4)*1024}')
a(f'''
s_mov_b32 s50, 0x05040100
s_mov_b32 s51, 0x07060302
v_lshlrev_b32 v13, 2, v9
v_lshlrev_b32 v6, 4, v6
s_and_b32 s45, {S_WAVE}, 1
s_mul_i32 s45, s45, {32*80}
s_lshl_b32 s46, s44, 4
s_add_u32 s45, s45, s46
v_lshl_add_u32 v14, v4, 2, s45
s_movk_i32 s46, {8*80}
v_mad_u32_u24 v14, v5, s46, v14
v_mul_u32_u24 v15, 80, v9
s_lshl_b32 s45, {S_WAVE}, 7
s_add_u32 s45, s45, {L_H}
v_and_b32 v7, 31, v9
v_lshl_add_u32 v7, v7, 1, s45
v_lshl_add_u32 v8, v3, 4, s45
s_lshl_b32 s45, {S_ID}, 11
s_lshl_b32 s46, {S_WAVE}, 8
s_add_u32 s45, s45, s46
s_add_u32 s45, s45, {WS_Y}
v_lshl_add_u32 v10, v11, 4, s45
s_waitcnt vmcnt(8)
''')
stamp(1)
for s in range(8):
    for e in range(4):
        a(f'v_perm_b32 v{64+4*s+e}, v{16+4*(2*e+1)+s//2}, v{16+4*(2*e)+s//2}, s{50+(s&1)}')
a('s_waitcnt vmcnt(0)')
for s in range(4):
    for e in range(4):
        a(f'v_perm_b32 v{96+4*s+e}, v{48+2*(2*e+1)+s//2}, v{48+2*(2*e)+s//2}, s{50+(s&1)}')
stamp(2)
poll_keys('L_ffn_poll', 'v13', 'v16', 's52')
stamp(3)
a(f'''
s_not_b32 s53, s52
s_and_b32 s53, s53, 0x7ff
s_lshl_b32 s53, s53, 10
v_add_u32 v6, s53, v6
global_load_dwordx4 v[16:19], v6, {P_U}
s_mov_b32 s54, 0x00f0000f
s_mov_b32 s55, 0xf0000f00
s_waitcnt vmcnt(0)
''')
stamp(4)
for s in range(8):
    a(f'v_mfma_f32_16x16x32_bf16 v[{20+4*s}:{23+4*s}], v[16:19], v[{64+4*s}:{67+4*s}], 0')
a('s_mov_b64 exec, s[54:55]')
a('s_nop 0')
for s in range(0, 8, 2):
    if s: a('s_nop 0')
    a(f'ds_write2_b32 v14, v{20+4*s}, v{24+4*s} offset0:{20*s} offset1:{20*(s+1)}')
a(f'''
s_mov_b64 exec, -1
s_waitcnt lgkmcnt(0)
s_barrier
ds_read_b128 v[20:23], v15
ds_read_b128 v[24:27], v15 offset:16
ds_read_b128 v[28:31], v15 offset:32
ds_read_b128 v[32:35], v15 offset:48
s_waitcnt lgkmcnt(2)
v_pk_add_f32 v[20:21], v[20:21], v[22:23]
v_pk_add_f32 v[24:25], v[24:25], v[26:27]
s_waitcnt lgkmcnt(0)
v_pk_add_f32 v[28:29], v[28:29], v[30:31]
v_pk_add_f32 v[32:33], v[32:33], v[34:35]
v_pk_add_f32 v[20:21], v[20:21], v[24:25]
v_pk_add_f32 v[28:29], v[28:29], v[32:33]
v_pk_add_f32 v[20:21], v[20:21], v[28:29]
v_add_f32 v20, v20, v21
v_mov_b32 v21, v20
s_nop 1
v_permlane32_swap_b32 v20, v21
v_mul_f32 v22, {NLOG2E}, v20
v_exp_f32 v22, v22
v_mul_f32 v20, v20, v21
v_add_f32 v22, 1.0, v22
v_rcp_f32 v22, v22
s_nop 0
v_mul_f32 v20, v20, v22
v_cvt_pk_bf16_f32 v20, v20, v20
ds_write_b16 v7, v20
ds_read_b128 v[16:19], v8
s_waitcnt lgkmcnt(0)
''')
for s in range(4):
    a(f'v_mfma_f32_16x16x32_bf16 v[{20+4*s}:{23+4*s}], v[16:19], v[{96+4*s}:{99+4*s}], 0')
a('s_mov_b64 exec, 0xffff')
a('s_nop 3')
for s in range(4):
    a(f'v_or_b32 v{40+s}, 1, v{20+4*s}')
a(f'global_store_dwordx4 v10, v[40:43], {P_WS} sc1')
stamp(5)
a('s_branch L_done')

a(f'''
L_conv:
v_mov_b32 v1, 0
v_lshrrev_b32 v6, 5, v0
v_and_b32 v7, 31, v0
s_movk_i32 s46, {PH}
v_lshlrev_b32 v8, 2, v7
v_mad_u32_u24 v6, v6, s46, v8
v_add_u32 v6, {L_UP}, v6
ds_write_b32 v6, v1
v_and_b32 v6, 12, v8
v_add_u32 v6, {L_FLAG}, v6
ds_write_b32 v6, v1
s_mul_i32 s48, {S_WAVE}, {VW}
s_mul_i32 s49, {S_WAVE}, {UW}
s_mov_b32 m0, s48
v_lshrrev_b32 v6, 5, v9
v_mul_u32_u24 v40, {RS}, v7
v_lshl_add_u32 v40, v6, 4, v40
s_add_u32 s50, s49, {L_U}
v_add_u32 v41, s50, v40
v_add_u32 v40, s48, v40
v_lshlrev_b32 v42, 5, v7
v_lshl_add_u32 v42, v6, 4, v42
v_add_u32 v42, s48, v42
v_lshlrev_b32 v43, 4, v7
v_lshrrev_b32 v43, v6, v43
v_lshl_add_u32 v43, v6, 9, v43
v_add_u32 v43, s48, v43
v_mul_u32_u24 v44, 248, v6
v_add_u32 v44, v43, v44
v_lshl_add_u32 v45, v6, 9, v8
v_add_u32 v45, s48, v45
v_mov_b32 v72, 0x3c00
ds_write_addtid_b32 v72
s_add_u32 s49, s49, {M0U}
s_cmp_ge_u32 {S_WAVE}, 4
s_cbranch_scc1 L_conv_w
s_waitcnt vmcnt(1)
L_conv_w:
s_waitcnt vmcnt(9)
''')
stamp(1)
H = {k: 60 + k for k in range(11)}
a(f'''
v_mul_f32 v14, {LOG2E}, v14
v_mul_f32 v10, {LOG2E}, v10
v_exp_f32 v14, v14
v_exp_f32 v10, v10
v_max3_f32 v46, |v12|, |v13|, 0
v_mul_f32 v11, {INV2PI}, v11
v_cvt_pk_bf16_f32 v10, v10, v14
v_max_u32_dpp v46, v46, v46 row_shr:1 row_mask:0xf bank_mask:0xf
v_and_b32 v14, 0xffff0000, v10
v_lshlrev_b32 v10, 16, v10
v_max_u32_dpp v46, v46, v46 row_shr:2 row_mask:0xf bank_mask:0xf
v_mul_f32 v10, v10, v14
v_mul_f32 v11, v11, v14
v_max_u32_dpp v46, v46, v46 row_shr:4 row_mask:0xf bank_mask:0xf
v_mul_f32 v10, {NLOG2E}, v10
v_mul_f32 v55, 0x42000000, v11
v_max_u32_dpp v46, v46, v46 row_shr:8 row_mask:0xf bank_mask:0xf
v_mul_f32 v54, 0x42000000, v10
v_fract_f32 v11, v11
v_max_u32_dpp v46, v46, v46 row_bcast:15 row_mask:0xa bank_mask:0xf
v_fract_f32 v55, v55
v_exp_f32 v10, v10
v_max_u32_dpp v46, v46, v46 row_bcast:31 row_mask:0xc bank_mask:0xf
v_exp_f32 v54, v54
v_cos_f32 v50, v11
v_readlane_b32 s50, v46, 63
v_sin_f32 v51, v11
v_cos_f32 v52, v55
v_sin_f32 v53, v55
v_mul_f32 v50, v50, v10
v_mul_f32 v51, v51, v10
v_mul_f32 v52, v52, v54
v_mul_f32 v53, v53, v54
s_and_b32 s50, s50, 0x7f800000
s_max_u32 s50, s50, 0x07000000
s_sub_u32 s51, {(267 << 23) & 0xffffffff}, s50
s_sub_u32 s50, s50, {12 << 23}
''')
def sqr(re, im, t):
    a(f'v_mul_f32 v{t}, v{im}, v{im}')
    a(f'v_add_f32 v{t+1}, v{re}, v{re}')
    a(f'v_fma_f32 v{re}, v{re}, v{re}, -v{t}')
    a(f'v_mul_f32 v{im}, v{t+1}, v{im}')
for st in range(6):
    if st < 5: a(f'v_cvt_pk_f16_f32 v{H[st]}, v50, v51')
    a(f'v_cvt_pk_f16_f32 v{H[5+st]}, v52, v53')
    if st < 4: sqr(50, 51, 56)
    if st < 5: sqr(52, 53, 58)
    if st == 4:
        a('v_mul_f32 v12, s51, v12')
        a('v_mul_f32 v13, s51, v13')
        a('v_mul_f32 v14, s50, v14')
def cmul(d, x, b, conj=False):
    a(f'v_pk_mul_f16 v{d}, v{x}, v{b} op_sel:[0,0] op_sel_hi:[1,0]')
    return f'v_pk_fma_f16 v{d}, v{x}, v{b}, v{d} op_sel:[1,1,0] op_sel_hi:[0,1,1] ' + ('neg_hi:[1,0,0]' if conj else 'neg_lo:[1,0,0]')
Vr = {}
for j in range(1, 32):
    top = j.bit_length() - 1
    Vr[j] = H[3+top] if j == 1 << top else 72 + j
for j in (1, 2, 4, 8, 16):
    a(f'ds_write_addtid_b32 v{Vr[j]} offset:{j*RS}')
pend = []
order = [j for j in range(1, 32) if j & (j-1)]
done = set([1, 2, 4, 8, 16])
i = 0
while i < len(order):
    grp = [order[i]]
    if i + 1 < len(order):
        j2 = order[i+1]
        if (j2 - (1 << (j2.bit_length()-1))) in done: grp.append(j2)
    f = [cmul(Vr[j], Vr[j - (1 << (j.bit_length()-1))], H[3 + j.bit_length() - 1]) for j in grp]
    for x in f: a(x)
    for j in grp:
        a(f'ds_write_addtid_b32 v{Vr[j]} offset:{j*RS}'); done.add(j)
    i += len(grp)
a('s_mov_b32 m0, s49')
a('v_cvt_pk_f16_f32 v104, v12, -v13')
for ks in range(8):
    a(f'ds_read_b128 v[{160+4*ks}:{163+4*ks}], v40 offset:{32*ks}')
rows = [0,1,2,3,4,5,6,7,256,258,260,262,512,516,768,772,1024,1280,1536,1792,2048]
Ur = {p: 104 + i for i, p in enumerate(rows)}
a(f'ds_write_addtid_b32 v104 offset:{OFFU}')
ugen = [(1,0,0),(2,0,1),(4,0,2),(256,0,8),(512,0,9),(1024,0,10),(3,2,0),(5,4,0),(6,4,1),(258,2,8),(260,4,8),(516,4,9),
        (768,256,9),(1280,256,10),(1536,512,10),(2048,1024,10),(7,6,0),(262,6,8),(772,260,9),(1792,768,10)]
for i in range(0, 20, 2):
    f = [cmul(Ur[p], Ur[s], H[k], conj=True) for (p, s, k) in ugen[i:i+2]]
    for x in f: a(x)
    for (p, s, k) in ugen[i:i+2]:
        a(f'ds_write_addtid_b32 v{Ur[p]} offset:{OFFU + rows.index(p)*RS}')
for ks in range(8):
    a(f'ds_read_b128 v[{128+4*ks}:{131+4*ks}], v41 offset:{32*ks}')
for ks in range(8):
    a(f's_waitcnt lgkmcnt({7-ks})')
    a(f'v_mfma_f32_32x32x16_f16 v[192:207], v[{128+4*ks}:{131+4*ks}], v[{160+4*ks}:{163+4*ks}], ' + ('0' if ks == 0 else 'v[192:207]'))
a('s_nop 11')
for r in range(12):
    a(f'v_mul_f32 v{192+r}, v{192+r}, v14')
a(f'''
ds_write_b128 v42, v[192:195]
ds_write_b64 v43, v[196:197] offset:1024
ds_write_b64 v44, v[198:199] offset:1032
ds_write2_b32 v45, v200, v201 offset0:0 offset1:32
ds_write2_b32 v45, v202, v203 offset0:64 offset1:96
''')
a.lines = [l.replace('v_add_u32 v45, s48, v45', f'v_add3_u32 v45, s48, v45, v47') for l in a.lines]
idx = a.lines.index('v_lshl_add_u32 v45, v6, 9, v8')
a.lines.insert(idx, 'v_mov_b32 v47, 0x800')
a(f'''
s_waitcnt lgkmcnt(0)
s_barrier
''')
stamp(2)
a(f'''
s_cmp_ge_u32 {S_WAVE}, 4
s_cbranch_scc1 L_helper
''')
a(f'''
s_mul_i32 s48, {S_WAVE}, {2*VW}
s_mul_i32 s49, {S_WAVE}, {KW}
v_lshl_add_u32 v2, v9, 4, s48
v_lshl_add_u32 v3, v9, 3, s48
ds_read_b128 v[32:35], v2
ds_read_b128 v[36:39], v2 offset:{VW}
''')
for s in range(3):
    b = 40 + 8*s
    o = 1024 + 512*s
    a(f'ds_read_b64 v[{b}:{b+1}], v3 offset:{o}')
    a(f'ds_read_b32 v{b+2}, v3 offset:{o+8}')
    a(f'ds_read_b64 v[{b+4}:{b+5}], v3 offset:{o+VW}')
    a(f'ds_read_b32 v{b+6}, v3 offset:{o+8+VW}')
a(f'''
s_add_u32 s49, s49, {L_K}
v_lshl_add_u32 v4, v9, 3, s49
v_lshl_add_u32 v5, v9, 4, s49
v_lshl_add_u32 v6, v9, 5, s49
v_mov_b32 v10, 0
v_mov_b32 v11, 0
v_and_b32 v7, 3, v9
v_lshl_add_u32 v7, v7, 3, s49
ds_write_b64 v7, v[10:11]
s_waitcnt lgkmcnt(13)
v_pk_add_f32 v[32:33], v[32:33], v[36:37]
v_pk_add_f32 v[34:35], v[34:35], v[38:39]
v_cvt_pk_bf16_f32 v32, v32, v33
v_cvt_pk_bf16_f32 v33, v34, v35
s_waitcnt lgkmcnt(9)
ds_write_b64 v4, v[32:33] offset:32
v_pk_add_f32 v[40:41], v[40:41], v[44:45]
v_add_f32 v42, v42, v46
v_cvt_pk_bf16_f32 v40, v40, v40
v_cvt_pk_bf16_f32 v41, v41, v42
s_waitcnt lgkmcnt(6)
ds_write_b64 v4, v[40:41] offset:{32+512}
v_pk_add_f32 v[48:49], v[48:49], v[52:53]
v_add_f32 v50, v50, v54
v_cvt_pk_bf16_f32 v36, v48, v48
v_cvt_pk_bf16_f32 v37, v48, v49
v_cvt_pk_bf16_f32 v38, v49, v49
v_cvt_pk_bf16_f32 v39, v50, v50
s_waitcnt lgkmcnt(3)
ds_write_b128 v5, v[36:39] offset:{32+1024}
v_pk_add_f32 v[56:57], v[56:57], v[60:61]
v_add_f32 v58, v58, v62
v_cvt_pk_bf16_f32 v44, v56, v56
v_cvt_pk_bf16_f32 v46, v56, v57
v_cvt_pk_bf16_f32 v47, v57, v57
v_cvt_pk_bf16_f32 v50, v58, v58
v_mov_b32 v45, v44
v_mov_b32 v48, v47
v_mov_b32 v49, v47
v_mov_b32 v51, v50
ds_write_b128 v6, v[44:47] offset:{32+2048}
ds_write_b128 v6, v[48:51] offset:{32+2048+16}
''')
AREG = 192
a(f'''
v_and_b32 v2, 3, v9
v_bfe_u32 v3, v9, 2, 2
v_lshrrev_b32 v8, 4, v9
v_sub_u32 v2, v2, v3
v_lshlrev_b32 v3, 3, v8
v_sub_u32 v2, v2, v3
s_add_u32 s49, s49, {32 + 2*(112-16)}
v_lshl_add_u32 v2, v2, 3, s49
''')
for g in list(range(1, 16, 2)) + list(range(0, 16, 2)):
    a(f'ds_read_b64_tr_b16 v[{AREG+4*g}:{AREG+4*g+1}], v2 offset:{256*g+32}')
    a(f'ds_read_b64_tr_b16 v[{AREG+4*g+2}:{AREG+4*g+3}], v2 offset:{256*g}')
a(f'''
s_mul_i32 s48, {S_WAVE}, {4*PH}
s_add_u32 s48, s48, {L_UP + 8}
v_and_b32 v3, 15, v9
v_lshl_add_u32 v3, v3, 3, s48
v_lshl_add_u32 v3, v8, 4, v3
s_lshl_b32 s48, {S_WAVE}, 13
v_lshl_add_u32 v4, v9, 4, s48
s_mul_i32 s48, {S_WAVE}, {YCW}
s_add_u32 s48, s48, {L_YC}
v_lshl_add_u32 v5, v9, 4, s48
s_sub_u32 s48, s48, 16
v_mov_b32 v7, s48
s_lshl_b32 s48, {S_WAVE}, 2
s_add_u32 s48, s48, {L_FLAG}
v_mov_b32 v6, s48
v_mov_b32 v12, 0
v_mov_b32 v13, 0
s_waitcnt lgkmcnt(0)
s_barrier
''')
stamp(3)
if DEBUGK:
    a(f'''
s_lshl_b32 s48, {S_ID}, 2
s_add_u32 s48, s48, {S_WAVE}
s_lshl_b32 s48, s48, 12
s_add_u32 s48, s48, 0x40000
v_lshl_add_u32 v14, v9, 4, s48
s_mul_i32 s48, {S_WAVE}, {KW}
s_add_u32 s48, s48, {L_K+32}
v_lshl_add_u32 v15, v9, 4, s48
''')
    for i in range(4):
        a(f'ds_read_b128 v[16:19], v15 offset:{1024*i}')
        a('s_waitcnt lgkmcnt(0)')
        a(f'global_store_dwordx4 v14, v[16:19], {P_WS} offset:{1024*i}')
        a('s_waitcnt vmcnt(0)')
a('ds_write_b128 v7, v[10:13]')
ACC = 64
BREG = 32
NB = 8
DIST = 6
def acc(rho, t): return ACC + 16*t + 4*rho
steps = [(m, rho) for m in range(-1, 15) for rho in range(4)]
dsq = ['z']
def ds(tag, text):
    a(text); dsq.append(tag)
def bread(s):
    m, rho = steps[s]
    b = BREG + 4*(s % NB)
    o = rho*PH + 64*(m+1)
    ds(('b', s, 0), f'ds_read_b64 v[{b}:{b+1}], v3 offset:{o}')
    ds(('b', s, 1), f'ds_read_b64 v[{b+2}:{b+3}], v3 offset:{o+8}')
for s in range(DIST): bread(s)
fill = []
nm = 0
def combine(t):
    D = [acc(r, t) for r in range(4)]
    L = []
    for d, s in ((D[0]+1, D[1]), (D[0]+2, D[1]+1), (D[0]+3, D[1]+2), (D[0]+2, D[2]), (D[0]+3, D[2]+1), (D[3]+1, D[1]+3), (D[3]+2, D[2]+3), (D[0]+3, D[3]), (D[3]+1, D[2]+2)):
        L.append(('v', f'v_add_f32 v{d}, v{d}, v{s}'))
    L.append(('v', f'v_mov_b32 v14, {t+1}'))
    L.append(('d', f'ds_write_b128 v4, v[{D[0]}:{D[0]+3}] offset:{1024*t}'))
    L.append(('d', f'ds_write_b128 v5, v[{D[3]}:{D[3]+3}] offset:{1024*t}'))
    L.append(('d', f'ds_write_b32 v6, v14'))
    return L
since = 99
for s, (m, rho) in enumerate(steps):
    if s + DIST < len(steps): bread(s + DIST); since += 2
    last = len(dsq) - 1 - dsq.index(('b', s, 1))
    a(f's_waitcnt lgkmcnt({min(last, 15)})'); since += 1
    b = BREG + 4*(s % NB)
    ts = [t for t in range(8) if 0 <= 2*t - m <= 15]
    for t in ts:
        g = 2*t - m
        d = acc(rho, t)
        a(f'v_mfma_f32_16x16x32_bf16 v[{d}:{d+3}], v[{AREG+4*g}:{AREG+4*g+3}], v[{b}:{b+3}], ' + ('0' if m == -1 else f'v[{d}:{d+3}]'))
        since += 1
        if g == 0 and rho == 3:
            assert not fill
            fill = combine(t); since = 0
        elif fill and since > 8:
            for _ in range(2 if m < 12 else 4):
                if fill:
                    k, txt = fill.pop(0)
                    (ds('w', txt) if k == 'd' else a(txt))
a('s_nop 7')
for k, txt in fill: a(txt)
stamp(4)
a('s_branch L_done')

a(f'''
L_helper:
s_mov_b32 s50, 0x05040100
s_mov_b32 s51, 0x07060302
v_lshlrev_b32 v2, 2, v0
v_add_u32 v2, {L_UP + 128 - 1024}, v2
s_waitcnt vmcnt(0)
''')
stamp(3)
for c in range(4):
    for rho in range(4):
        a(f'v_perm_b32 v{40+4*c+rho}, v{16+2*(rho+4)+c//2}, v{16+2*rho+c//2}, s{50+(c&1)}')
for c in range(4):
    for rho in range(4):
        a(f'ds_write_b32 v2, v{40+4*c+rho} offset:{(4*c+rho)*PH}')
a(f'''
v_lshlrev_b32 v13, 2, v9
s_sub_u32 s44, {S_WAVE}, 4
v_and_b32 v3, 15, v9
v_lshrrev_b32 v4, 4, v9
v_lshl_add_u32 v3, v3, 2, v4
s_lshl_b32 s45, s44, 6
v_add_u32 v3, s45, v3
s_waitcnt lgkmcnt(0)
s_barrier
''')
a(f'''
v_lshlrev_b32 v36, 16, v32
v_and_b32 v37, 0xffff0000, v32
v_lshlrev_b32 v38, 16, v33
v_and_b32 v39, 0xffff0000, v33
v_add_f32 v36, -1.0, v36
v_add_f32 v37, -1.0, v37
v_add_f32 v38, -1.0, v38
v_add_f32 v39, -1.0, v39
v_lshrrev_b32 v5, 3, v3
v_lshlrev_b32 v5, 4, v3
s_lshl_b32 s46, {S_ID}, 3
v_lshl_add_u32 v6, v3, 12, s46
v_lshlrev_b32 v7, 1, v3
v_add_u32 v7, {L_UP + 128}, v7
s_lshl_b32 s45, s44, 10
v_lshl_add_u32 v8, v9, 4, s45
v_subrev_u32 v10, 16, v9
v_add_u32 v11, 47, v9
v_cmp_gt_u32 s[46:47], 16, v9
v_cmp_eq_u32 s[48:49], 0, v9
s_add_u32 s45, s45, {L_YC}
v_cndmask_b32 v10, v10, v11, s[46:47]
v_cndmask_b32 v10, v10, -1, s[48:49]
v_lshl_add_u32 v10, v10, 4, s45
v_mov_b32 v12, {L_FLAG}
''')
for r in range(16): a(f'v_mov_b32 v{64+r}, 0')
poll_keys('L_h_poll', 'v13', 'v16', 's52')
stamp(4)
a(f'''
s_mov_b32 s58, 0
L_h_g:
global_load_dwordx4 v[20:23], v5, {P_WS} sc1
global_load_dwordx4 v[24:27], v5, {P_WS} offset:-4096 sc1
''')
a.lines[-2] = f'global_load_dwordx4 v[20:23], v5, {P_WS} offset:-4096 sc1'
a.lines[-1] = f'global_load_dwordx4 v[24:27], v5, {P_WS} sc1'
i5 = a.lines.index('v_lshrrev_b32 v5, 3, v3')
a.lines[i5] = 'v_lshlrev_b32 v5, 4, v3'
a.lines[i5+1] = 'v_add_u32 v5, 0x1000, v5'
a(f'''
s_add_u32 s58, s58, 1
s_waitcnt vmcnt(0)
v_min3_u32 v16, v20, v21, v22
v_min3_u32 v17, v23, v24, v25
v_min3_u32 v16, v16, v26, v27
v_min_u32 v16, v16, v17
v_cmp_eq_u32 vcc, 0, v16
s_cmp_gt_u32 s58, {SPIN}
s_cbranch_scc1 L_h_gx
s_cbranch_vccnz L_h_g
L_h_gx:
s_mov_b32 s45, s44
L_task:
''')
for c in range(4):
    for i in range(4):
        a(f'ds_read_u16_d16_hi v{64+4*c+i}, v7 offset:{(4*c+i)*PH}')
a(f'''
s_mov_b32 s58, 0
L_flag:
ds_read_b128 v[16:19], v12
s_add_u32 s58, s58, 1
s_waitcnt lgkmcnt(0)
v_min3_u32 v16, v16, v17, v18
v_min_u32 v16, v16, v19
s_cmp_gt_u32 s58, {SPIN}
v_readfirstlane_b32 s46, v16
s_cbranch_scc1 L_flag_x
s_cmp_gt_u32 s46, s45
s_cbranch_scc1 L_flag_x
s_sleep 1
s_branch L_flag
L_flag_x:
''')
for c in range(4):
    a(f'ds_read_b128 v[{80+8*c}:{83+8*c}], v8 offset:{8192*c}')
    a(f'ds_read_b128 v[{84+8*c}:{87+8*c}], v10 offset:{YCW*c}')
for c in range(4):
    a(f's_waitcnt lgkmcnt({6-2*c})')
    for i in range(3):
        a(f'v_add_f32 v{80+8*c+i}, v{80+8*c+i}, v{85+8*c+i}')
    for i in range(4):
        a(f'v_fmac_f32 v{80+8*c+i}, v{36+c}, v{64+4*c+i}')
    for i in range(4):
        a(f'v_fma_f32 v{80+8*c+i}, v{20+i}, v{80+8*c+i}, v{64+4*c+i}')
for i in range(4):
    a(f'v_cvt_pk_bf16_f32 v{112+2*i}, v{80+i}, v{88+i}')
    a(f'v_cvt_pk_bf16_f32 v{113+2*i}, v{96+i}, v{104+i}')
    a(f'global_store_dwordx2 v6, v[{112+2*i}:{113+2*i}], {P_OUT} offset:{1024*i}')
a(f'''
s_cmp_ge_u32 s45, 4
s_cbranch_scc1 L_patch
s_add_u32 s45, s45, 4
v_add_u32 v6, 0x100000, v6
v_add_u32 v7, 512, v7
v_add_u32 v8, 0x1000, v8
v_add_u32 v10, 0x1000, v10
v_mov_b32 v20, v24
v_mov_b32 v21, v25
v_mov_b32 v22, v26
v_mov_b32 v23, v27
s_branch L_task
L_patch:
''')
stamp(5)
a(f'''
s_not_b32 s53, s52
s_and_b32 s53, s53, 0x7ff
s_bfe_u32 s46, s53, 0x20008
s_cmp_lg_u32 s46, s44
s_cbranch_scc1 L_done
v_and_b32 v3, 3, v9
s_lshl_b32 s46, {S_ID}, 2
v_add_u32 v4, s46, v3
v_lshlrev_b32 v5, 1, v4
v_mov_b32 v20, 0
global_load_short_d16_hi v20, v5, {P_DSK}
s_lshl_b32 s46, s53, 2
v_mov_b32 v6, s46
global_load_dword v21, v6, {P_WS} sc1
s_lshl_b32 s46, s53, 10
v_add_u32 v5, s46, v5
v_lshrrev_b32 v6, 2, v9
v_lshlrev_b32 v6, 13, v6
v_lshl_add_u32 v6, v4, 2, v6
v_add_u32 v6, {WS_Y + 4096}, v6
s_bfe_u32 s46, s53, 0x40004
s_bfe_u32 s47, s53, 0x20002
s_lshl_b32 s47, s47, 4
s_add_u32 s46, s46, s47
s_and_b32 s48, s53, 3
s_lshr_b32 s49, s53, 8
s_lshl_b32 s49, s49, 10
s_lshl_b32 s54, s48, 2
s_add_u32 s49, s49, s54
s_lshl_b32 s54, s46, 4
s_add_u32 s54, s54, s49
v_lshl_add_u32 v7, v3, 13, s54
ds_read_b32 v22, v7
s_sub_u32 s54, s46, 16
s_add_u32 s55, s46, 47
s_cmp_lt_u32 s46, 16
s_cselect_b32 s54, s55, s54
s_cmp_eq_u32 s46, 0
s_cselect_b32 s54, -1, s54
s_lshl_b32 s54, s54, 4
s_add_u32 s54, s54, s49
s_add_u32 s54, s54, {L_YC + 4}
s_movk_i32 s55, {YCW}
v_mov_b32 v7, s54
v_mad_u32_u24 v7, v3, s55, v7
ds_read_b32 v23, v7
s_mul_i32 s54, s48, {PH}
s_lshr_b32 s55, s53, 2
s_lshl_b32 s55, s55, 1
s_add_u32 s54, s54, s55
s_add_u32 s54, s54, {L_UP + 128}
s_movk_i32 s55, {4*PH}
v_mov_b32 v7, s54
v_mad_u32_u24 v7, v3, s55, v7
v_mov_b32 v24, 0
ds_read_u16_d16_hi v24, v7
s_and_b32 s54, s52, 0xfffff000
s_xor_b32 s55, s54, 0x80000000
s_not_b32 s56, s54
s_bitcmp1_b32 s54, 31
s_cselect_b32 s54, s55, s56
v_cvt_pk_bf16_f32 v25, s54, s54
v_and_b32 v25, 0xffff0000, v25
v_mul_f32 v25, {NLOG2E}, v25
v_exp_f32 v25, v25
s_cmp_eq_u32 s48, 3
s_cselect_b32 s54, 0, -1
v_add_f32 v25, 1.0, v25
v_rcp_f32 v25, v25
v_mov_b32 v28, 0
v_mov_b32 v29, 0
v_mov_b32 v30, 0
v_mov_b32 v31, 0
s_waitcnt vmcnt(0) lgkmcnt(0)
v_and_b32 v23, s54, v23
v_add_f32 v20, -1.0, v20
v_add_f32 v22, v22, v23
v_fmac_f32 v22, v20, v24
v_fma_f32 v22, v21, v22, v24
v_sub_f32 v21, 1.0, v21
v_mul_f32 v25, v25, v21
s_mov_b32 exec_hi, 0x00ffffff
s_mov_b32 s58, 0
L_yp:
''')
for i in range(4):
    a(f'global_load_dword v{28+i}, v6, {P_WS} offset:{(i-2)*2048} sc1')
a(f'''
s_add_u32 s58, s58, 1
s_waitcnt vmcnt(0)
v_min3_u32 v16, v28, v29, v30
v_min_u32 v16, v16, v31
v_cmp_eq_u32 vcc, 0, v16
s_cmp_gt_u32 s58, {SPIN}
s_cbranch_scc1 L_ypx
s_cbranch_vccnz L_yp
L_ypx:
s_mov_b64 exec, -1
''')
stamp(6)
a(f'''
v_add_f32 v28, v28, v29
v_add_f32 v30, v30, v31
v_add_f32 v28, v28, v30
s_nop 1
v_add_f32_dpp v28, v28, v28 row_ror:8 row_mask:0xf bank_mask:0xf
s_nop 1
v_add_f32_dpp v28, v28, v28 row_ror:4 row_mask:0xf bank_mask:0xf
v_mov_b32 v29, v28
s_nop 1
v_permlane16_swap_b32 v28, v29
v_add_f32 v28, v28, v29
v_mov_b32 v29, v28
s_nop 1
v_permlane32_swap_b32 v28, v29
v_add_f32 v28, v28, v29
v_fmac_f32 v22, v28, v25
v_cvt_pk_bf16_f32 v22, v22, v22
s_mov_b64 exec, 15
global_store_short v5, v22, {P_OUT}
L_done:
''')
if STAMPS:
    a('s_waitcnt vmcnt(0)')
    stamp(7)
    a(f'''
s_mov_b64 exec, 1
s_lshl_b32 s46, s2, 3
s_add_u32 s46, s46, {S_WAVE}
s_lshl_b32 s46, s46, 6
s_add_u32 s46, s46, 0x100000
v_mov_b32 v1, s46
s_waitcnt lgkmcnt(0)
''')
    for i in range(8):
        a(f'v_mov_b32 v2, s{64+2*i}')
        a(f'v_mov_b32 v3, s{65+2*i}')
        a(f'global_store_dwordx2 v1, v[2:3], {P_WS} offset:{8*i}')
        a('s_nop 0')
a('L_exit:')
a('s_endpgm')
a('L_code_end:')

probs = check(a.lines)
for p in probs: print('HAZARD', p, file=sys.stderr)

hdr = open('cdna_kernels/%s.s.ref' % KN).read().split('; Override launch geometry')[0] if os.path.exists('cdna_kernels/%s.s.ref' % KN) else ''
src = hdr + f'''; @launch grid=(256,1,1) block=(512,1,1) lds={LDS_BYTES}
.amdgcn_target "amdgcn-amd-amdhsa--gfx950"
.text
.globl {KN}_kernel
.p2align 8
.type {KN}_kernel,@function
{KN}_kernel:
{a.text()}.section .rodata,"a"
.p2align 6
.amdhsa_kernel {KN}_kernel
  .amdhsa_next_free_vgpr 256
  .amdhsa_next_free_sgpr 96
  .amdhsa_accum_offset 256
  .amdhsa_group_segment_fixed_size 0
  .amdhsa_kernarg_size 128
  .amdhsa_user_sgpr_count 2
  .amdhsa_user_sgpr_kernarg_segment_ptr 1
  .amdhsa_system_sgpr_workgroup_id_x 1
.end_amdhsa_kernel
'''
open(OUT, 'w').write(src)
print('wrote', OUT, len(a.lines), 'lines', file=sys.stderr)
```

```python
import sys; sys.path.insert(0,'exp')
from mk import wrap
def gen(name, instrs, block, reps=64):
    body = '''
    v_mov_b32 v2, 1.0
    v_mov_b32 v3, 0.5
'''
    for r in range(4, 100): body += f'    v_mov_b32 v{r}, 0.5\n'
    body += '''
    s_mov_b32 s20, 0
    s_barrier
L_warm:
'''
    body += '''
    s_barrier
    s_memtime s[60:61]
    s_waitcnt lgkmcnt(0)
    s_mov_b32 s21, 0
L_loop:
'''
    body += instrs
    body += f'''
    s_add_u32 s21, s21, 1
    s_cmp_lt_u32 s21, {reps}
    s_cbranch_scc1 L_loop
    s_barrier
    s_memtime s[62:63]
    s_waitcnt lgkmcnt(0)
    s_add_u32 s20, s20, 1
    s_cmp_lt_u32 s20, 3
    s_cbranch_scc1 L_warm
    s_sub_u32 s62, s62, s60
    v_cmp_eq_u32 vcc, 0, v0
    s_and_saveexec_b64 s[56:57], vcc
    s_cbranch_execz L_end
    s_cmp_lg_u32 s2, 0
    s_cbranch_scc1 L_end
    s_load_dwordx2 s[52:53], s[0:1], 112
    s_waitcnt lgkmcnt(0)
    v_mov_b32 v100, 0
    v_mov_b32 v102, s62
    global_store_dword v100, v102, s[52:53]
L_end:
'''
    open(f'exp/{name}.s','w').write(wrap(body, vgpr=128, block=block, lds=65536))

N = 32
tests = {
 'fma': ''.join(f'    v_fma_f32 v{4+i}, v2, v3, v{4+i}\n' for i in range(N)),
 'fmac': ''.join(f'    v_fmac_f32 v{4+i}, v2, v3\n' for i in range(N)),
 'pkfma': ''.join(f'    v_pk_fma_f32 v[{4+2*i}:{5+2*i}], v[2:3], v[2:3], v[{4+2*i}:{5+2*i}]\n' for i in range(N)),
 'pkmul': ''.join(f'    v_pk_mul_f32 v[{4+2*i}:{5+2*i}], v[2:3], v[{4+2*i}:{5+2*i}] op_sel_hi:[0,1]\n' for i in range(N)),
 'exp': ''.join(f'    v_exp_f32 v{4+i}, v3\n' for i in range(N)),
 'sin': ''.join(f'    v_sin_f32 v{4+i}, v3\n' for i in range(N)),
 'cvtpk': ''.join(f'    v_cvt_pk_bf16_f32 v{4+i}, v2, v3\n' for i in range(N)),
 'perm': ''.join(f'    v_perm_b32 v{4+i}, v2, v3, v99\n' for i in range(N)),
 'dep': ''.join(f'    v_fma_f32 v4, v2, v3, v4\n' for i in range(N)),
 'pkdep': ''.join(f'    v_pk_fma_f32 v[4:5], v[2:3], v[2:3], v[4:5]\n' for i in range(N)),
 'dot2': ''.join(f'    v_dot2_f32_bf16 v{4+i}, v2, v3, v{4+i}\n' for i in range(N)),
}
names = []
for k, v in tests.items():
    for w in (1, 2, 4):
        gen(f'va_{k}_{w}', v, 256*w); names.append(f'exp/va_{k}_{w}.s')
print(' '.join(names))
import json; print(json.dumps(names))
```

```python
KN = 'gated_mix__ssm_conv_s4d__moe_arch_mod__prompt'
def wrap(body, grid=256, block=256, lds=0, vgpr=128, sgpr=96, accum=None):
    if accum is None: accum = (vgpr + 3)//4*4
    return f'''; @launch grid=({grid},1,1) block=({block},1,1) lds={lds}
.amdgcn_target "amdgcn-amd-amdhsa--gfx950"
.text
.globl {KN}_kernel
.p2align 8
.type {KN}_kernel,@function
{KN}_kernel:
{body}
s_endpgm
.section .rodata,"a"
.p2align 6
.amdhsa_kernel {KN}_kernel
  .amdhsa_next_free_vgpr {vgpr}
  .amdhsa_next_free_sgpr {sgpr}
  .amdhsa_accum_offset {accum}
  .amdhsa_group_segment_fixed_size 0
  .amdhsa_kernarg_size 128
  .amdhsa_user_sgpr_count 2
  .amdhsa_user_sgpr_kernarg_segment_ptr 1
  .amdhsa_system_sgpr_workgroup_id_x 1
.end_amdhsa_kernel
'''
```

```python
import sys; sys.path.insert(0,'exp')
import mb_valu
from mb_valu import gen
import glob, os
for f in glob.glob('va_*'): os.remove(f)
def mf(i):
    d = 40 + 4*(i % 2)
    return f'    v_mfma_f32_16x16x32_bf16 v[{d}:{d+3}], v[{4+4*(i%4)}:{7+4*(i%4)}], v[24:27], v[{d}:{d+3}]\n'
N = 126
A = lambda d, s: f'    v_add_f32 v{d}, v{d}, v{s}\n'
Dp = lambda d, s, t, m: f'    v_add_f32_dpp v{d}, v{s}, v{t} row_ror:8 row_mask:0xf bank_mask:{m}\n'
Mv = lambda d, s: f'    v_mov_b32_dpp v{d}, v{s} quad_perm:[0,1,2,3] row_mask:0xf bank_mask:0xc\n'
S = lambda r, o: f'    ds_write_b32 v97, v{r} offset:{o}\n'
F = '    ds_write_b8 v99, v28\n'
pats = {
 'comb': [A(62,65)+A(61,64), A(63,66)+Dp(62,60,62,'0x3'), Dp(63,61,63,'0x3')+Dp(60,67,62,'0xc'), S(63,3264), Mv(61,63)+Mv(62,67), S(60,0), S(61,1088), S(62,2176), F],
 'dd': [Dp(63,61,63,'0x3')+Dp(60,67,62,'0xc'), '', ''],
 'pp': [A(62,65)+A(61,64), '', ''],
 'pd': [A(63,66)+Dp(62,60,62,'0x3'), '', ''],
 'mm': [Mv(61,63)+Mv(62,67), '', ''],
 'dS': [Dp(63,61,63,'0x3'), S(63,0), ''],
 'ddS': [Dp(63,61,63,'0x3')+Dp(60,67,62,'0xc'), S(63,0), ''],
 'Sdd': [S(63,0), Mv(61,63)+Mv(62,67), ''],
 'SSF': [S(60,0), S(61,1088), F],
}
for name, pat in pats.items():
    ins = ''.join(mf(i) + pat[i % len(pat)] for i in range(N))
    gen(f'va_{name}', ins, 256, reps=16)
    p = f'va_{name}.s'
    s = open(p).read().replace('    s_mov_b32 s20, 0\n    s_barrier\n', '''    v_and_b32 v1, 63, v0
    v_lshlrev_b32 v98, 4, v1
    v_bfe_u32 v97, v1, 3, 1
    v_lshl_add_u32 v97, v97, 3, v98
    v_mov_b32 v99, 0
    s_mov_b32 s20, 0
    s_barrier
''', 1)
    s = s.replace('L_loop:', '.p2align 6\nL_loop:')
    open(p,'w').write(s)
```

```python
import sys; sys.path.insert(0,'exp')
from mk import wrap
NST = 8
def stamp(i): return f'    s_memrealtime s[{60+2*i}:{61+2*i}]\n'
def stamp_out(n=NST):
    s = '''
    s_waitcnt lgkmcnt(0)
    v_cmp_eq_u32 vcc, 0, v0
    s_and_saveexec_b64 s[56:57], vcc
    s_cbranch_execz L_end
    s_load_dwordx2 s[52:53], s[0:1], 120
    s_waitcnt lgkmcnt(0)
    s_add_u32 s52, s52, 0x100000
    s_addc_u32 s53, s53, 0
    s_mul_i32 s54, s2, %d
    v_mov_b32 v100, s54
''' % (n*8)
    for i in range(n):
        s += f'    v_mov_b32 v102, s{60+2*i}\n    v_mov_b32 v103, s{61+2*i}\n    global_store_dwordx2 v100, v[102:103], s[52:53] offset:{8*i}\n    s_nop 1\n'
    s += 'L_end:\n'
    return s

def gen(xcd_aware, width, name, store=True):
    body = ''
    for i in range(NST): body += f'    s_mov_b32 s{60+2*i}, 0\n    s_mov_b32 s{61+2*i}, 0\n'
    body += stamp(0)
    body += '''
    s_load_dwordx2 s[4:5], s[0:1], 0
    s_load_dwordx2 s[6:7], s[0:1], 104
    s_waitcnt lgkmcnt(0)
'''
    body += stamp(1)
    body += '''
    s_mov_b32 s8, s4
    s_mov_b32 s9, s5
    s_mov_b32 s10, 2097152
    s_mov_b32 s11, 0x00020000
    s_mov_b32 s12, s6
    s_mov_b32 s13, s7
    s_mov_b32 s14, 2097152
    s_mov_b32 s15, 0x00020000
'''
    if xcd_aware:
        body += '''
    s_and_b32 s16, s2, 7
    s_lshr_b32 s17, s2, 3
    s_lshl_b32 s16, s16, 5
    s_add_u32 s16, s16, s17      ; c = (b&7)*32 + (b>>3)
'''
    else:
        body += '    s_mov_b32 s16, s2\n'
    nper = {4: 8, 8: 4, 16: 2}[width]
    sh = {4: 0, 8: 1, 16: 2}[width]
    body += f'''
    s_lshr_b32 s18, s16, {sh}
    s_mul_i32 s18, s18, {width}
    s_and_b32 s19, s16, {(1<<sh)-1}
    s_mul_i32 s19, s19, {(2048>>sh)*1024}
    s_add_u32 s18, s18, s19
    v_lshlrev_b32 v1, {10 + (3-sh)}, v0
    v_add_u32 v1, s18, v1
'''
    op = {4: 'dword', 8: 'dwordx2', 16: 'dwordx4'}[width]
    w = width//4
    for i in range(nper):
        reg = f'v{8+i*w}' if w == 1 else f'v[{8+i*w}:{8+i*w+w-1}]'
        if i*1024 < 4096:
            body += f'    buffer_load_{op} {reg}, v1, s[8:11], 0 offen offset:{i*1024}\n'
        else:
            body += f'    s_mov_b32 s20, {i*1024}\n    buffer_load_{op} {reg}, v1, s[8:11], s20 offen\n'
    body += stamp(2)
    body += '    s_waitcnt vmcnt(0)\n'
    body += stamp(3)
    body += '    s_barrier\n'
    body += stamp(4)
    if store:
        for i in range(nper):
            reg = f'v{8+i*w}' if w == 1 else f'v[{8+i*w}:{8+i*w+w-1}]'
            if i*1024 < 4096:
                body += f'    buffer_store_{op} {reg}, v1, s[12:15], 0 offen offset:{i*1024}\n'
            else:
                body += f'    s_mov_b32 s20, {i*1024}\n    buffer_store_{op} {reg}, v1, s[12:15], s20 offen\n'
        body += stamp(5)
        body += '    s_waitcnt vmcnt(0)\n'
        body += stamp(6)
        body += '    s_barrier\n'
        body += stamp(7)
    body += stamp_out()
    open(f'exp/{name}.s','w').write(wrap(body, vgpr=128))
gen(True, 4, 'mem_x4'); gen(False, 4, 'mem_n4'); gen(True, 8, 'mem_x8'); gen(True, 16, 'mem_x16'); gen(False, 16, 'mem_n16')
```

```python
import sys; sys.path.insert(0,'exp')
from mk import wrap
from mb_mem import stamp, stamp_out, NST
def gen(name, spacing, pad, jump=False):
    body = ''
    for i in range(8):
        body += f'L_s{i}:\n' + stamp(i)
        if jump: body += f'    s_branch L_s{i+1}\n.rept {(spacing-12)//4}\n    s_nop 0\n.endr\n'
        else: body += f'.rept {(spacing-8)//8}\n    v_fma_f32 v4, v2, v3, v2\n.endr\n'
    body += 'L_s8:\n' + stamp_out()
    s = wrap(body, vgpr=128, block=256)
    s = s.replace('.p2align 8\n', f'.p2align 12\n.rept {pad//4}\n    s_endpgm\n.endr\n.p2align 8\n', 1)
    open(f'exp/{name}.s','w').write(s)
gen('ic4_a', 256, 4096-0x300); gen('ic4_b', 640, 4096-0x300); gen('ic4_c', 256, 4096-0x300, True); gen('ic4_d', 640, 4096-0x300, True); gen('ic4_e', 128, 4096-0x300, True); gen('ic4_f', 256, 2048-0x300+256, True)
```
